```python
import torch

def _softmax(x, axis=-1):
    return torch.softmax(x, dim=axis)

def _gelu(x):
    return torch.nn.functional.gelu(x, approximate='tanh')

def _silu(x):
    return torch.nn.functional.silu(x)

def _sigmoid(x):
    return torch.sigmoid(x)

def _layernorm(x, axis=-1, eps=1e-05):
    m = x.mean(dim=axis, keepdim=True)
    v = x.var(dim=axis, keepdim=True, unbiased=False)
    return (x - m) / torch.sqrt(v + eps)

def _scatter_add(tgt, idx, src, axis=0):
    return tgt.clone().index_add_(axis, idx, src)

def _segment_sum(src, seg, n):
    out = torch.zeros((n,) + src.shape[1:], dtype=src.dtype)
    return out.index_add_(0, seg, src)

def _pad(x, pw):
    flat = tuple((v for pair in reversed(pw) for v in pair))
    return torch.nn.functional.pad(x, flat)
kernel_name = 'standalone__molecular_angular_painn__graph'

def setup_inputs():

    _w = lambda a: (lambda t: t.to(torch.bfloat16) if t.is_floating_point() else t)(torch.as_tensor(a))
    N, deg, D = (10000, 16, 256)
    n_rbf = max(0, 4)
    E = N * deg
    cutoff = 5.0
    freqs = (torch.arange(1, n_rbf + 1) * torch.pi / cutoff).to(float)
    return {'sv': _w((lambda *s: torch.randn(*s, dtype=torch.bfloat16) * 0.4)(N, 4, D) * 0.3), 'pos': _w((lambda *s: torch.randn(*s, dtype=torch.bfloat16) * 3.2)(N, 3) * 1.2), 'src': _w((lambda lo, hi, *s: torch.randint(lo, hi, s))(0, N, E).to(torch.int64)), 'dst': _w((lambda lo, hi, *s: torch.randint(lo, hi, s))(0, N, E).to(torch.int64)), 'freqs': _w(freqs), 'w_phi1': _w((lambda *s: torch.randn(*s, dtype=torch.bfloat16) * 3.2)(D, D) / D ** 0.5), 'w_phi2': _w((lambda *s: torch.randn(*s, dtype=torch.bfloat16) * 3.2)(D, 3 * D) / D ** 0.5), 'w_rbf': _w((lambda *s: torch.randn(*s, dtype=torch.bfloat16) * 3.2)(n_rbf, 3 * D) / n_rbf ** 0.5)}

def reference(sv, pos, src, dst, freqs, w_phi1, w_phi2, w_rbf):
    N, _, D = sv.shape
    E = src.shape[0]
    PI, cutoff = (3.141592653589793, 5.0)
    s, v = (sv[:, 0, :].clone(), sv[:, 1:, :].clone())
    r_vec = pos[src] - pos[dst]
    d = torch.sqrt((r_vec * r_vec).sum(-1) + 1e-08)
    r_hat = r_vec / d[:, None]
    rbf = torch.sin(d[:, None] * freqs[None, :]) / d[:, None]
    fcut = 0.5 * (torch.cos(PI * d / cutoff) + 1.0)
    fcut = torch.where(d < cutoff, fcut, 0.0 * d)
    Wf = rbf @ w_rbf * fcut[:, None]
    phi = (_silu(s @ w_phi1) @ w_phi2)[src]
    m = phi * Wf
    m_s, m_vv, m_vr = (m[:, :D].clone(), m[:, D:2 * D].clone(), m[:, 2 * D:].clone())
    ds = _segment_sum(m_s, dst, N)
    dv_e = m_vv[:, None, :] * v[src] + m_vr[:, None, :] * r_hat[:, :, None]
    dv = _segment_sum(dv_e.reshape(E, 3 * D), dst, N).reshape(N, 3, D)
    return sv + torch.concatenate([ds[:, None, :], dv], axis=1)
```

```python
import re

TRANS = ('v_exp_f32', 'v_log_f32', 'v_rcp_f32', 'v_rsq_f32', 'v_sqrt_f32', 'v_sin_f32', 'v_cos_f32', 'v_rcp_iflag_f32')

def parse_regs(tok):
    tok = tok.strip()
    neg = tok.lstrip('-')
    if neg.startswith('abs(') or neg.startswith('|'):
        neg = neg.replace('abs(', '').replace(')', '').replace('|', '')
    m = re.fullmatch(r'([vsa])\[(\d+):(\d+)\]', neg)
    if m:
        return {(m.group(1), i) for i in range(int(m.group(2)), int(m.group(3)) + 1)}
    m = re.fullmatch(r'([vsa])(\d+)', neg)
    if m:
        return {(m.group(1), int(m.group(2)))}
    if neg in ('vcc', 'vcc_lo', 'vcc_hi'):
        return {('s', 'vcc')}
    if neg in ('exec', 'exec_lo', 'exec_hi'):
        return {('s', 'exec')}
    if neg == 'm0':
        return {('s', 'm0')}
    return set()

class Ins:
    __slots__ = ('text', 'op', 'ops', 'w', 'r', 'kind', 'passes', 'srcc', 'srcab', 'nop', 'dpp', 'storedata', 'lanesel')
    def __init__(self, text):
        self.text = text
        t = text.split(';')[0].strip()
        parts = t.split(None, 1)
        self.op = parts[0]
        rest = parts[1] if len(parts) > 1 else ''
        toks = [x.strip() for x in rest.split(',')] if rest else []
        if toks:
            last = toks[-1].split()
            mods = ' '.join(last[1:])
            toks[-1] = last[0] if last else ''
        else:
            mods = ''
        self.ops = toks
        op = self.op
        self.w = set(); self.r = set(); self.passes = 0; self.srcc = set(); self.srcab = set()
        self.nop = 1; self.dpp = False; self.storedata = set(); self.lanesel = set()
        R = [parse_regs(x) for x in toks]
        allr = lambda idx: set().union(*[R[i] for i in idx]) if idx else set()
        n = len(toks)
        if op == 's_nop':
            self.kind = 'nop'; self.nop = int(toks[0], 0) + 1
        elif op.startswith('v_mfma') or op.startswith('v_smfmac'):
            self.kind = 'mfma'
            self.w = R[0]; self.srcab = R[1] | R[2]; self.srcc = R[3]; self.r = self.srcab | self.srcc
            if '32x32x16' in op or '32x32x8' in op: self.passes = 8
            elif '16x16x32' in op or '16x16x16' in op: self.passes = 4
            elif '4x4x4' in op: self.passes = 2
            else: raise ValueError(op)
        elif op.startswith('v_cmp'):
            self.kind = 'valu'; self.w = R[0]; self.r = allr(range(1, n))
            if op.startswith('v_cmpx'): self.w |= {('s', 'exec')}
        elif op in ('v_readlane_b32', 'v_readfirstlane_b32'):
            self.kind = 'valu_rl'; self.w = R[0]; self.r = allr(range(1, n))
            if op == 'v_readlane_b32': self.lanesel = R[2]
        elif op == 'v_writelane_b32':
            self.kind = 'valu'; self.w = R[0]; self.r = allr(range(0, n)); self.lanesel = R[2]
        elif op.startswith('v_permlane'):
            self.kind = 'valu_perm'; self.w = R[0] | R[1]; self.r = R[0] | R[1]
        elif op.startswith('v_'):
            self.kind = 'trans' if any(op.startswith(x) for x in TRANS) else 'valu'
            self.w = set(R[0]); self.r = allr(range(1, n))
            if op.startswith(('v_add_co', 'v_sub_co', 'v_subrev_co', 'v_addc_co', 'v_subb_co', 'v_div_scale')):
                self.w |= R[1]; self.r = allr(range(2, n))
            if op.startswith(('v_fmac', 'v_dot2c', 'v_mac', 'v_pk_fmac')): self.r |= R[0]
            if op.startswith('v_cndmask') and n == 3: self.r |= {('s', 'vcc')}
            if '_dpp' in op or 'row_' in mods or 'quad_perm' in mods or 'wave_' in mods:
                self.dpp = True
                self.r |= R[0]
            if '_sdwa' in op: self.r |= R[0]
            if 'd16' in op: self.r |= R[0]
        elif op.startswith(('buffer_', 'global_', 'flat_', 'scratch_')):
            self.kind = 'vmem'
            if '_load' in op and ' lds' not in (' ' + mods) and 'load_lds' not in op:
                self.w = R[0]; self.r = allr(range(1, n))
                if 'd16' in op: self.r |= R[0]
            elif '_load' in op:
                self.r = allr(range(0, n)) | {('s', 'm0')}
                self.kind = 'vmem_lds'
            elif 'atomic' in op:
                self.r = allr(range(0, n))
                if 'sc0' in mods:
                    self.w = R[0]
            else:
                self.r = allr(range(0, n))
                if 'x4' in op or 'x3' in op:
                    self.storedata = R[1] if op.startswith('global_') or op.startswith('flat_') else R[0]
        elif op.startswith('ds_'):
            self.kind = 'ds'
            if op.startswith(('ds_read', 'ds_bpermute', 'ds_permute', 'ds_swizzle')) or '_rtn' in op:
                self.w = R[0]; self.r = allr(range(1, n))
                if 'd16' in op: self.r |= R[0]
            else:
                self.r = allr(range(0, n))
        elif op.startswith('s_'):
            self.kind = 'salu'
            if op.startswith(('s_cmp', 's_cbranch', 's_branch', 's_waitcnt', 's_barrier', 's_endpgm', 's_setprio', 's_sleep', 's_bitcmp')):
                self.r = allr(range(0, n))
            elif op.startswith(('s_load', 's_buffer_load', 's_memtime', 's_memrealtime')):
                self.kind = 'smem'; self.w = R[0]; self.r = allr(range(1, n))
            else:
                self.w = set(R[0]) if n else set(); self.r = allr(range(1, n))
                if 'saveexec' in op: self.w |= {('s', 'exec')}; self.r |= {('s', 'exec')}
                if op.startswith(('s_bitset', 's_addk', 's_mulk')): self.r |= R[0]
        else:
            raise ValueError('unknown op ' + text)

def isv(regs): return {x for x in regs if x[0] in 'va'}
def iss(regs): return {x for x in regs if x[0] == 's'}

def need(prev, cur):
    req = 0
    pk, ck = prev.kind, cur.kind
    valu_p = pk in ('valu', 'trans', 'valu_rl', 'valu_perm')
    valu_c = ck in ('valu', 'trans', 'valu_rl', 'valu_perm')
    if valu_p and ck == 'mfma' and isv(prev.w) & cur.r: req = max(req, 2)
    if pk == 'mfma':
        P = prev.passes
        tab_rw = {2: 5, 4: 8, 8: 12, 16: 20}[P]
        if ck == 'mfma':
            if prev.w & cur.srcab: req = max(req, tab_rw)
            if prev.w & cur.srcc:
                if prev.w == cur.srcc and cur.passes == P: req = max(req, 2 if P == 2 else 0)
                else: req = max(req, {2: 4, 4: 6, 8: 10, 16: 18}[P])
            if (prev.w & cur.w) and not (prev.w & cur.srcc): req = max(req, {2: 4, 4: 6, 8: 10, 16: 18}[P])
        else:
            if prev.w & (cur.r | cur.w): req = max(req, tab_rw)
        if valu_c and (prev.srcc & cur.w): req = max(req, {2: 1, 4: 3, 8: 7, 16: 15}[P])
    if pk == 'trans' and ck != 'trans' and (valu_c or ck == 'mfma') and (prev.w & cur.r): req = max(req, 1)
    if pk == 'trans' and ck == 'trans' and (prev.w & cur.r): req = max(req, 1)
    if valu_p:
        sw = iss(prev.w)
        if sw:
            if valu_c and (sw & cur.r):
                req = max(req, 2)
            if cur.lanesel & sw: req = max(req, 4)
            if ck in ('vmem', 'vmem_lds') and (sw & cur.r): req = max(req, 5)
            if ck in ('salu', 'smem') and (sw & cur.r): req = max(req, 1)
            if ('s', 'exec') in sw and (valu_c or ck == 'mfma'): req = max(req, 5)
        vw = isv(prev.w)
        if ck == 'valu_rl' and (vw & cur.r): req = max(req, 1)
        if cur.dpp and (vw & cur.r): req = max(req, 2)
        if ck == 'valu_perm' and (vw & cur.r): req = max(req, 2)
    if prev.storedata:
        if valu_c and (prev.storedata & cur.w): req = max(req, 2)
        elif prev.storedata & cur.w: req = max(req, 1)
    if pk == 'salu' and ('s', 'm0') in prev.w and (ck == 'vmem_lds' or 'addtid' in cur.op): req = max(req, 1)
    if valu_p and '_sdwa' in prev.op and valu_c and (prev.w & cur.r): req = max(req, 1)
    return req

WINDOW = 24

class Asm:
    def __init__(self):
        self.lines = []
    def __call__(self, text):
        for ln in text.split('\n'):
            s = ln.strip()
            if not s or s.startswith(';'):
                continue
            if s.endswith(':') and ' ' not in s:
                self.lines.append(('label', s[:-1]))
            elif s.startswith('.'):
                self.lines.append(('dir', s))
            else:
                self.lines.append(('ins', s))
    def label(self, name): self.lines.append(('label', name))
    def raw(self, text): self.lines.append(('dir', text))

    def finalize(self):
        out = []
        hist = []
        for (t, s) in self.lines:
            if t != 'ins':
                out.append((t, s, None))
                continue
            cur = Ins(s)
            dist = 0; pad = 0
            for p in reversed(hist[-WINDOW:]):
                r = need(p, cur)
                if r > dist: pad = max(pad, r - dist)
                dist += p.nop
                if dist >= 20: break
            while pad > 0:
                k = min(pad, 16)
                ni = Ins(f's_nop {k-1}')
                out.append(('ins', ni.text, ni)); hist.append(ni); pad -= k
            out.append(('ins', s, cur)); hist.append(cur)
            if cur.op in ('s_endpgm',): hist = []
        labels = {s: i for i, (t, s, _) in enumerate(out) if t == 'label'}
        problems = []
        for i, (t, s, ins) in enumerate(out):
            if t == 'ins' and (ins.op.startswith('s_cbranch') or ins.op == 's_branch'):
                tgt = ins.ops[0]
                if tgt not in labels: raise ValueError('missing label ' + tgt)
                pre = [x[2] for x in out[max(0, i - 60):i + 1] if x[0] == 'ins'][-WINDOW:]
                post = [x[2] for x in out[labels[tgt]:labels[tgt] + 80] if x[0] == 'ins'][:WINDOW]
                for j, cur in enumerate(post):
                    dist = sum(q.nop for q in post[:j])
                    for p in reversed(pre):
                        r = need(p, cur)
                        if r > dist:
                            problems.append(f'edge {s} -> {tgt}: {p.text}  ==> {cur.text} needs {r} has {dist}')
                        dist += p.nop
                        if dist >= 20: break
        if problems:
            raise RuntimeError('hazards on branch edges:\n' + '\n'.join(problems))
        txt = []
        for (t, s, _) in out:
            if t == 'label': txt.append(s + ':')
            elif t == 'dir': txt.append(s)
            else: txt.append('  ' + s)
        return '\n'.join(txt) + '\n'
```

```python
import sys
sys.path.insert(0, 'gen')
from asmlib import Asm

N = 10000; E = 160000
WS_PHI = 0
WS_CNT = 0x1000000
WS_LIST = 0x1100000
WS_OVF = 0x1800000
CAP = 32
NEDGE_WG = 40
MROWS = 48
NMLP_WG = (N + MROWS - 1) // MROWS
K1_GRID = NEDGE_WG + NMLP_WG
K1_LDS = 83968

HEADER = open('standalone__molecular_angular_painn__graph.s.ref').read().split('; Override launch')[0]

def srd(a, d, base, size, off=0):
    if off:
        a(f's_add_u32 s{d}, s{base}, {hex(off)}')
        a(f's_addc_u32 s{d+1}, s{base+1}, 0')
    else:
        a(f's_mov_b32 s{d}, s{base}')
        a(f's_mov_b32 s{d+1}, s{base+1}')
    a(f's_mov_b32 s{d+2}, {size}')
    a(f's_mov_b32 s{d+3}, 0x20000')

def kd(name, vgpr, sgpr, accum=None):
    accum = accum or ((vgpr + 3) // 4 * 4)
    return f'''.p2align 6
.amdhsa_kernel {name}
  .amdhsa_next_free_vgpr {vgpr}
  .amdhsa_next_free_sgpr {sgpr}
  .amdhsa_accum_offset {accum}
  .amdhsa_group_segment_fixed_size 0
  .amdhsa_kernarg_size 88
  .amdhsa_user_sgpr_count 2
  .amdhsa_user_sgpr_kernarg_segment_ptr 1
  .amdhsa_system_sgpr_workgroup_id_x 1
.end_amdhsa_kernel
'''

def k1_mlp(a, opt):
    a('s_load_dwordx2 s[4:5], s[0:1], 0')
    a('s_load_dwordx4 s[8:11], s[0:1], 40')
    a('s_load_dwordx2 s[6:7], s[0:1], 80')
    a('v_and_b32 v1, 63, v0')
    a('v_lshrrev_b32 v2, 6, v0')
    a('v_and_b32 v3, 15, v1')
    a('v_lshrrev_b32 v4, 4, v1')
    a('v_readfirstlane_b32 s3, v2')
    a(f's_sub_u32 s2, s2, {NEDGE_WG}')
    a(f's_mul_i32 s12, s2, {MROWS}')
    a('s_waitcnt lgkmcnt(0)')
    srd(a, 16, 4, N * 2048)
    srd(a, 20, 8, 256 * 512)
    srd(a, 24, 10, 256 * 1536)
    srd(a, 28, 6, 0x1000000, WS_PHI)
    AUXA = opt.get('aux_a', '')
    AUXW = opt.get('aux_w', '')
    AUXP = opt.get('aux_phi', '')
    VA = 16
    VB = 112
    D = 4
    VF = VB + D * 16
    VC = VF + 8
    VT = VC + 48
    a('v_add_u32 v5, s12, v3')
    a('v_lshlrev_b32 v5, 11, v5')
    a('v_lshl_add_u32 v5, v4, 4, v5')
    a(f'v_add_u32 v6, {16*2048}, v5')
    a(f'v_add_u32 v7, {32*2048}, v5')
    a('s_lshl_b32 s13, s3, 7')
    a('v_lshlrev_b32 v8, 12, v4')
    a('v_lshl_add_u32 v8, v3, 3, v8')
    a('v_add_u32 v8, s13, v8')
    a(f'v_mul_u32_u24 v9, {8*1536}, v4')
    a('v_lshl_add_u32 v9, v3, 3, v9')
    a('v_add_u32 v9, s13, v9')
    a('v_add_u32 v10, 4608, v9')
    a('v_add_u32 v11, 9216, v9')
    a('s_mov_b32 s14, 0x05040100')
    a('s_mov_b32 s15, 0x07060302')

    def load_step(s):
        r = VB + (s % D) * 16
        L = []
        if s < 8:
            L.append(f's_mov_b32 s40, {s * 16384}')
            for t in range(8):
                L.append(f'buffer_load_dwordx2 v[{r+2*t}:{r+2*t+1}], v8, s[20:23], s40 offen offset:{t*512} {AUXW}')
        else:
            p = (s - 8) // 8; kk = (s - 8) % 8
            L.append(f's_mov_b32 s40, {kk * 32 * 1536 + p * 512}')
            for t in range(8):
                L.append(f'buffer_load_dwordx2 v[{r+2*t}:{r+2*t+1}], v{9 + t // 3}, s[24:27], s40 offen offset:{(t % 3) * 1536} {AUXW}')
        return L
    for kk in range(8):
        for mt in range(3):
            r = VA + (mt * 8 + kk) * 4
            a(f'buffer_load_dwordx4 v[{r}:{r+3}], v{5+mt}, s[16:19], 0 offen offset:{kk*64} {AUXA}')
        if kk < D:
            for x in load_step(kk): a(x)
    def zero_acc():
        for i in range(48): a(f'v_mov_b32 v{VC+i}, 0')
    zero_acc()
    a('v_mul_u32_u24 v12, 2112, v4')
    a('v_lshl_add_u32 v12, v3, 3, v12')
    a('v_add_u32 v12, s13, v12')
    a('v_mul_u32_u24 v13, 528, v3')
    a('v_lshl_add_u32 v13, v4, 4, v13')
    a('v_lshl_add_u32 v14, v4, 2, s12')
    a('v_mul_u32_u24 v14, 1536, v14')
    a('v_lshl_add_u32 v14, v3, 3, v14')
    a('v_add_u32 v14, s13, v14')

    out = []
    for kk in range(8):
        out += [('A', kk)] * 3
        if kk < D: out += [('W', kk)] * 8
    def wait_for(tags):
        last = max(i for i, t in enumerate(out) if t in tags)
        n = len(out) - 1 - last
        a(f's_waitcnt vmcnt({min(n, 63)})')
        del out[:last + 1]

    def perms(s, j):
        r = VB + (s % D) * 16
        f = VF + (j % 2) * 4
        sel = 's14' if j % 2 == 0 else 's15'
        return [f'v_perm_b32 v{f+q}, v{r + 2*(2*q+1) + j//2}, v{r + 2*(2*q) + j//2}, {sel}' for q in range(4)]
    def mfma(kk, j, mt):
        f = VF + (j % 2) * 4
        c = VC + (mt * 4 + j) * 4
        ar = VA + (mt * 8 + kk) * 4
        return f'v_mfma_f32_16x16x32_bf16 v[{c}:{c+3}], v[{ar}:{ar+3}], v[{f}:{f+3}], v[{c}:{c+3}]'

    def do_step(s):
        kk = s if s < 8 else (s - 8) % 8
        tags = [('W', s)]
        if s < 8: tags.append(('A', kk))
        pend = [t for t in tags if t in out]
        if pend: wait_for(pend)
        nxt = load_step(s + D) if s + D < 32 else []
        for x in perms(s, 0): a(x)
        for j in range(4):
            pn = perms(s, j + 1) if j < 3 else []
            m = [mfma(kk, j, mt) for mt in range(3)]
            a(m[0])
            if pn: a(pn[0]); a(pn[1])
            a(m[1])
            if pn: a(pn[2]); a(pn[3])
            a(m[2])
            if j == 3:
                pass
        for x in nxt: a(x)
        if nxt: out.extend([('W', s + D)] * 8)

    for s in range(8): do_step(s)
    a('s_mov_b32 s41, 0xbfb8aa3b')
    for mt in range(3):
        for i in range(4):
            regs = [VC + (mt * 4 + j) * 4 + i for j in range(4)]
            t = VT
            for j in range(4): a(f'v_mul_f32 v{t+j}, s41, v{regs[j]}')
            for j in range(4): a(f'v_exp_f32 v{t+j}, v{t+j}')
            for j in range(4): a(f'v_add_f32 v{t+j}, 1.0, v{t+j}')
            for j in range(4): a(f'v_rcp_f32 v{t+j}, v{t+j}')
            for j in range(4): a(f'v_mul_f32 v{t+j}, v{regs[j]}, v{t+j}')
            o = VT + 4 + ((mt * 4 + i) % 4) * 2
            a(f'v_cvt_pk_bf16_f32 v{o}, v{t}, v{t+1}')
            a(f'v_cvt_pk_bf16_f32 v{o+1}, v{t+2}, v{t+3}')
            a(f'ds_write_b64 v12, v[{o}:{o+1}] offset:{(16*mt + i) * 528}')
    zero_acc()
    a('s_waitcnt lgkmcnt(0)')
    a('s_barrier')
    for kk in range(8):
        for mt in range(3):
            r = VA + (mt * 8 + kk) * 4
            a(f'ds_read_b128 v[{r}:{r+3}], v13 offset:{mt * 16 * 528 + kk * 64}')
    a('s_waitcnt lgkmcnt(0)')
    for p in range(3):
        for kk in range(8): do_step(8 + p * 8 + kk)
        for mt in range(3):
            for i in range(4):
                regs = [VC + (mt * 4 + j) * 4 + i for j in range(4)]
                o = VT + ((mt * 4 + i) % 6) * 2
                a(f'v_cvt_pk_bf16_f32 v{o}, v{regs[0]}, v{regs[1]}')
                a(f'v_cvt_pk_bf16_f32 v{o+1}, v{regs[2]}, v{regs[3]}')
                a(f's_mov_b32 s42, {(16 * mt + i) * 1536 + p * 512}')
                a(f'buffer_store_dwordx2 v[{o}:{o+1}], v14, s[28:31], s42 offen {AUXP}')
                out.append(('S', p))
        if p < 2: zero_acc()
    a('s_endpgm')

def rnd2(a, x, y, t):
    a(f'v_cvt_pk_bf16_f32 v{t}, v{x}, v{y}')
    a(f'v_lshlrev_b32 v{x}, 16, v{t}')
    a(f'v_and_b32 v{y}, 0xffff0000, v{t}')
def rnd1(a, x, t):
    a(f'v_cvt_pk_bf16_f32 v{t}, v{x}, v{x}')
    a(f'v_and_b32 v{x}, 0xffff0000, v{t}')

def k1_edge(a, opt):
    a('s_load_dwordx4 s[4:7], s[0:1], 8')
    a('s_load_dwordx4 s[8:11], s[0:1], 24')
    a('s_load_dwordx4 s[12:15], s[0:1], 72')
    a('v_and_b32 v1, 63, v0')
    a('v_lshrrev_b32 v2, 6, v0')
    a('v_readfirstlane_b32 s3, v2')
    a('s_waitcnt lgkmcnt(0)')
    a('s_load_dwordx2 s[44:45], s[10:11], 0')
    srd(a, 16, 4, N * 6)
    srd(a, 20, 6, E * 4)
    srd(a, 24, 8, E * 4)
    srd(a, 28, 14, (N + 64) * 4, WS_CNT)
    srd(a, 32, 14, N * CAP * 16, WS_LIST)
    srd(a, 36, 14, E * 32, WS_OVF)
    AUXE = opt.get('aux_e', '')
    a('s_lshl_b32 s40, s2, 8')
    a('v_add_u32 v3, s40, v0')
    a('v_lshlrev_b32 v3, 2, v3')
    a('v_mov_b32 v4, 0')
    a('buffer_store_dword v4, v3, s[28:31], 0 offen sc1')
    a('s_lshl_b32 s40, s2, 12')
    a('s_lshl_b32 s41, s3, 10')
    a('s_add_u32 s40, s40, s41')
    a('v_lshlrev_b32 v5, 2, v1')
    a('v_add_u32 v5, s40, v5')
    a('v_lshlrev_b32 v6, 2, v5')
    VS = 16; VD = 32
    for q in range(4):
        a(f'buffer_load_dwordx4 v[{VS+4*q}:{VS+4*q+3}], v6, s[20:23], 0 offen offset:{q*1024} {AUXE}')
        a(f'buffer_load_dwordx4 v[{VD+4*q}:{VD+4*q+3}], v6, s[24:27], 0 offen offset:{q*1024} {AUXE}')
    a('v_lshlrev_b32 v7, 4, v1')
    a('s_lshl_b32 s41, s3, 12')
    a('v_add_u32 v7, s41, v7')
    for b in range(4):
        if b == 3:
            a('s_cmp_eq_u32 s3, 3')
            a('s_cbranch_scc1 L_e_dma_done')
        a('s_mov_b32 m0, s41')
        for o in range(4):
            a(f'buffer_load_dwordx4 v7, s[16:19], 0 offen offset:{o*1024} lds')
        a('s_add_u32 s41, s41, 16384')
        a('v_add_u32 v7, 16384, v7')
    a.label('L_e_dma_done')
    a(f's_mov_b32 s42, {E}')
    for q in range(4):
        a(f'v_add_u32 v8, {q*256}, v5')
        a(f'v_cmp_gt_u32 s[{48+2*q}:{49+2*q}], s42, v8')
    VP = 48
    for i in range(24): a(f'v_mov_b32 v{VP+i}, 0')
    a('s_waitcnt vmcnt(0)')
    a('s_barrier')
    a('v_cmp_eq_u32 vcc, 0, v0')
    a('s_and_saveexec_b64 s[56:57], vcc')
    a('s_cbranch_execz L_e_sig_done')
    a('v_mov_b32 v8, 0')
    a('v_mov_b32 v9, 1')
    a('global_atomic_add v8, v9, s[12:13]')
    a.label('L_e_sig_done')
    a('s_mov_b64 exec, s[56:57]')
    LIST0 = 61440
    a('s_lshl_b32 s43, s3, 12')
    a(f's_add_u32 s43, s43, {LIST0}')
    a('s_mov_b32 s58, s43')
    a('s_mov_b32 s59, 0x41d00000')
    for q in range(4):
        for j in range(4):
            a(f'v_mul_u32_u24 v{8+2*j}, 6, v{VS+4*q+j}')
            a(f'v_mul_u32_u24 v{9+2*j}, 6, v{VD+4*q+j}')
        for j in range(4):
            for c in range(3):
                a(f'ds_read_u16_d16_hi v{VP+6*j+c}, v{8+2*j} offset:{2*c}')
            for c in range(3):
                a(f'ds_read_u16_d16_hi v{VP+6*j+3+c}, v{9+2*j} offset:{2*c}')
        for j in range(4):
            a(f's_waitcnt lgkmcnt({min(15, 6*(3-j))})')
            p = VP + 6 * j
            a(f'v_sub_f32 v72, v{p}, v{p+3}')
            a(f'v_sub_f32 v73, v{p+1}, v{p+4}')
            a(f'v_sub_f32 v74, v{p+2}, v{p+5}')
            a('v_mul_f32 v72, v72, v72')
            a('v_fmac_f32 v72, v73, v73')
            a('v_fmac_f32 v72, v74, v74')
            a(f'v_lshl_or_b32 v75, v{VD+4*q+j}, 16, v{VS+4*q+j}')
            a('v_cmp_gt_f32 vcc, s59, v72')
            a(f's_and_b64 vcc, vcc, s[{48+2*q}:{49+2*q}]')
            a('v_mbcnt_lo_u32_b32 v76, vcc_lo, 0')
            a('v_mbcnt_hi_u32_b32 v76, vcc_hi, v76')
            a('v_lshl_add_u32 v76, v76, 2, s43')
            a('s_mov_b64 exec, vcc')
            a('ds_write_b32 v76, v75')
            a('s_mov_b64 exec, -1')
            a('s_bcnt1_i32_b64 s60, vcc')
            a('s_lshl_b32 s60, s60, 2')
            a('s_add_u32 s43, s43, s60')
    a.label('L_e_poll')
    a('v_mov_b32 v8, 0')
    a('global_load_dword v9, v8, s[12:13] sc1')
    a('s_waitcnt vmcnt(0)')
    a('v_readfirstlane_b32 s60, v9')
    a(f's_cmp_ge_u32 s60, {NEDGE_WG}')
    a('s_cbranch_scc1 L_e_poll_done')
    a('s_sleep 2')
    a('s_branch L_e_poll')
    a.label('L_e_poll_done')
    a('s_lshl_b32 s61, s44, 16')
    a('s_and_b32 s62, s44, 0xffff0000')
    a('s_lshl_b32 s63, s45, 16')
    a('s_and_b32 s64, s45, 0xffff0000')
    a('s_waitcnt lgkmcnt(0)')
    a.label('L_e_p2')
    a('s_cmp_ge_u32 s58, s43')
    a('s_cbranch_scc1 L_e_done')
    a('v_lshl_add_u32 v8, v1, 2, s58')
    a('v_cmp_gt_u32 s[66:67], s43, v8')
    a('ds_read_b32 v9, v8')
    a('s_add_u32 s58, s58, 256')
    a('s_waitcnt lgkmcnt(0)')
    a('v_and_b32 v10, 0xffff, v9')
    a('v_lshrrev_b32 v11, 16, v9')
    a('v_cndmask_b32 v10, 0, v10, s[66:67]')
    a('v_cndmask_b32 v11, 0, v11, s[66:67]')
    a('v_mul_u32_u24 v12, 6, v10')
    a('v_mul_u32_u24 v13, 6, v11')
    for c in range(3): a(f'ds_read_u16_d16_hi v{VP+c}, v12 offset:{2*c}')
    for c in range(3): a(f'ds_read_u16_d16_hi v{VP+3+c}, v13 offset:{2*c}')
    a('s_waitcnt lgkmcnt(0)')
    a(f'v_sub_f32 v16, v{VP}, v{VP+3}')
    a(f'v_sub_f32 v17, v{VP+1}, v{VP+4}')
    a(f'v_sub_f32 v18, v{VP+2}, v{VP+5}')
    rnd2(a, 16, 17, 30); rnd1(a, 18, 31)
    a('v_mul_f32 v19, v16, v16')
    a('v_mul_f32 v20, v17, v17')
    a('v_mul_f32 v21, v18, v18')
    rnd2(a, 19, 20, 30); rnd1(a, 21, 31)
    a('v_add_f32 v19, v19, v20')
    a('v_add_f32 v19, v19, v21')
    rnd1(a, 19, 30)
    a('v_add_f32 v19, 0x322bcc77, v19')
    rnd1(a, 19, 30)
    a('v_sqrt_f32 v19, v19')
    rnd1(a, 19, 30)
    a('s_mov_b32 s65, 0x40a00000')
    a('v_cmp_gt_f32 vcc, s65, v19')
    a('s_and_b64 s[66:67], s[66:67], vcc')
    a('v_lshlrev_b32 v14, 2, v11')
    a('v_mov_b32 v15, 1')
    a('s_mov_b64 exec, s[66:67]')
    a('s_cbranch_execz L_e_p2_next')
    a('buffer_atomic_add v15, v14, s[28:31], 0 offen sc0')
    a('v_rcp_f32 v22, v19')
    a('v_mul_f32 v23, v16, v22')
    a('v_mul_f32 v24, v17, v22')
    a('v_mul_f32 v25, v18, v22')
    for k in range(4): a(f'v_mul_f32 v{32+k}, s{61+k}, v19')
    rnd2(a, 32, 33, 30); rnd2(a, 34, 35, 31)
    for k in range(4): a(f'v_mul_f32 v{32+k}, 0.15915494, v{32+k}')
    for k in range(4): a(f'v_fract_f32 v{32+k}, v{32+k}')
    for k in range(4): a(f'v_sin_f32 v{32+k}, v{32+k}')
    rnd2(a, 32, 33, 30); rnd2(a, 34, 35, 31)
    for k in range(4): a(f'v_mul_f32 v{32+k}, v{32+k}, v22')
    rnd2(a, 32, 33, 30); rnd2(a, 34, 35, 31)
    a('v_mul_f32 v26, 0x40490fdb, v19')
    rnd1(a, 26, 30)
    a('v_mul_f32 v26, 0x3e4ccccd, v26')
    rnd1(a, 26, 30)
    a('v_mul_f32 v26, 0.15915494, v26')
    a('v_cos_f32 v26, v26')
    rnd1(a, 26, 30)
    a('v_add_f32 v26, 1.0, v26')
    rnd1(a, 26, 30)
    a('v_mul_f32 v26, 0.5, v26')
    for k in range(4): a(f'v_mul_f32 v{32+k}, v{32+k}, v26')
    a('v_cvt_pk_bf16_f32 v36, v32, v33')
    a('v_cvt_pk_bf16_f32 v37, v34, v35')
    a('v_cvt_pk_bf16_f32 v38, v23, v24')
    a('v_cvt_pk_bf16_f32 v39, v25, v25')
    a('v_and_b32 v39, 0xffff, v39')
    a('v_lshl_or_b32 v39, v10, 16, v39')
    a('s_waitcnt vmcnt(0)')
    a(f'v_cmp_gt_u32 vcc, {CAP}, v15')
    a('s_mov_b64 s[68:69], exec')
    a('s_and_b64 exec, exec, vcc')
    a('v_lshlrev_b32 v14, 9, v11')
    a('v_lshl_add_u32 v14, v15, 4, v14')
    a('s_cbranch_execz L_e_p2_ovf')
    a('buffer_store_dwordx4 v[36:39], v14, s[32:35], 0 offen')
    a.label('L_e_p2_ovf')
    a('s_andn2_b64 exec, s[68:69], vcc')
    a('s_cbranch_execz L_e_p2_next')
    a(f'v_mov_b32 v14, {N*4}')
    a('v_mov_b32 v15, 1')
    a('buffer_atomic_add v15, v14, s[28:31], 0 offen sc0')
    a('s_waitcnt vmcnt(0)')
    a('v_lshlrev_b32 v14, 5, v15')
    a('v_mov_b32 v40, v11')
    a('buffer_store_dwordx4 v[36:39], v14, s[32+4:32+7], 0 offen'.replace('s[32+4:32+7]', 's[36:39]'))
    a('buffer_store_dword v40, v14, s[36:39], 0 offen offset:16')
    a.label('L_e_p2_next')
    a('s_mov_b64 exec, -1')
    a('s_branch L_e_p2')
    a.label('L_e_done')
    a('s_endpgm')

def k1(opt):
    a = Asm()
    a.raw('.globl k1_kernel\n.p2align 8\n.type k1_kernel,@function')
    a.label('k1_kernel')
    a(f's_cmp_ge_u32 s2, {K1_GRID}')
    a('s_cbranch_scc1 L_k1_exit')
    a(f's_cmp_ge_u32 s2, {NEDGE_WG}')
    a('s_cbranch_scc1 L_k1_mlp')
    k1_edge(a, opt)
    a.label('L_k1_mlp')
    k1_mlp(a, opt)
    a.label('L_k1_exit')
    a('s_endpgm')
    return a.finalize()

K2U_WAVES = 2560
def k2u(opt):
    a = Asm()
    a.raw('.globl k2_kernel\n.p2align 8\n.type k2_kernel,@function')
    a.label('k2_kernel')
    a(f's_cmp_ge_u32 s2, {K2U_WAVES // 4}')
    a('s_cbranch_scc1 L_k2_exit')
    a('s_load_dwordx2 s[4:5], s[0:1], 0')
    a('s_load_dwordx4 s[8:11], s[0:1], 56')
    a('s_load_dwordx2 s[6:7], s[0:1], 80')
    a('v_and_b32 v1, 63, v0')
    a('v_lshrrev_b32 v2, 6, v0')
    a('v_readfirstlane_b32 s3, v2')
    a('s_lshl_b32 s12, s2, 2')
    a('s_add_u32 s12, s12, s3')
    a('s_waitcnt lgkmcnt(0)')
    srd(a, 16, 4, N * 2048)
    srd(a, 20, 8, 4 * 1536)
    srd(a, 24, 10, N * 2048)
    srd(a, 28, 6, N * 1536, WS_PHI)
    a(f's_add_u32 s32, s6, {hex(WS_CNT)}')
    a('s_addc_u32 s33, s7, 0')
    a(f's_add_u32 s34, s6, {hex(WS_LIST)}')
    a('s_addc_u32 s35, s7, 0')
    a(f's_add_u32 s36, s6, {hex(WS_OVF)}')
    a('s_addc_u32 s37, s7, 0')
    a('v_lshlrev_b32 v2, 3, v1')
    VW = 8
    for comp in range(3):
        for r in range(4):
            t = 80 + 2 * ((comp * 4 + r))
            a(f's_mov_b32 s40, {r * 1536 + comp * 512}')
            a(f'buffer_load_dwordx2 v[{t}:{t+1}], v2, s[20:23], s40 offen')
    a('s_waitcnt vmcnt(0)')
    for comp in range(3):
        for r in range(4):
            t = 80 + 2 * ((comp * 4 + r)); w = VW + (comp * 4 + r) * 4
            a(f'v_lshlrev_b32 v{w}, 16, v{t}')
            a(f'v_and_b32 v{w+1}, 0xffff0000, v{t}')
            a(f'v_lshlrev_b32 v{w+2}, 16, v{t+1}')
            a(f'v_and_b32 v{w+3}, 0xffff0000, v{t+1}')
    VACC = 56
    VSV = 72
    VX = 80
    VU = 92
    a.label('L_k2_node')
    a(f's_cmp_ge_u32 s12, {N}')
    a('s_cbranch_scc1 L_k2_exit')
    a('s_lshl_b32 s40, s12, 2')
    a('s_load_dword s13, s[32:33], s40')
    a(f's_load_dword s14, s[32:33], {N*4}')
    a('s_lshl_b32 s41, s12, 11')
    for c in range(4):
        a(f'buffer_load_dwordx2 v[{VSV+2*c}:{VSV+2*c+1}], v2, s[16:19], s41 offen offset:{c*512}')
    for i in range(16): a(f'v_mov_b32 v{VACC+i}, 0')
    a('s_waitcnt lgkmcnt(0)')
    a(f's_min_u32 s15, s13, {CAP}')
    a(f's_cmp_gt_u32 s13, {CAP}')
    a('s_cselect_b32 s14, s14, 0')
    a('s_add_u32 s14, s14, s15')
    a('s_mov_b32 s38, 0')
    a.label('L_k2_edge')
    a('s_cmp_ge_u32 s38, s14')
    a('s_cbranch_scc1 L_k2_store')
    a('s_cmp_ge_u32 s38, s15')
    a('s_cbranch_scc1 L_k2_ovf')
    a('s_lshl_b32 s40, s12, 9')
    a('s_lshl_b32 s42, s38, 4')
    a('s_add_u32 s40, s40, s42')
    a('s_load_dwordx4 s[44:47], s[34:35], s40')
    a('s_waitcnt lgkmcnt(0)')
    a('s_branch L_k2_proc')
    a.label('L_k2_ovf')
    a('s_sub_u32 s40, s38, s15')
    a('s_lshl_b32 s40, s40, 5')
    a('s_load_dwordx8 s[44:51], s[36:37], s40')
    a('s_waitcnt lgkmcnt(0)')
    a('s_cmp_lg_u32 s48, s12')
    a('s_cbranch_scc1 L_k2_next')
    a.label('L_k2_proc')
    a('s_lshr_b32 s52, s47, 16')
    a('s_mul_i32 s53, s52, 1536')
    a('s_lshl_b32 s54, s52, 11')
    for c in range(3):
        a(f'buffer_load_dwordx2 v[{VX+2*c}:{VX+2*c+1}], v2, s[28:31], s53 offen offset:{c*512}')
    for c in range(3):
        a(f'buffer_load_dwordx2 v[{VX+6+2*c}:{VX+6+2*c+1}], v2, s[16:19], s54 offen offset:{(c+1)*512}')
    a('s_lshl_b32 s56, s44, 16')
    a('s_and_b32 s57, s44, 0xffff0000')
    a('s_lshl_b32 s58, s45, 16')
    a('s_and_b32 s59, s45, 0xffff0000')
    a('s_lshl_b32 s60, s46, 16')
    a('s_and_b32 s61, s46, 0xffff0000')
    a('s_lshl_b32 s62, s47, 16')
    for comp in range(3):
        for ch in range(4):
            u = VU + comp * 4 + ch
            a(f'v_mul_f32 v{u}, s56, v{VW + (comp*4+0)*4 + ch}')
            for r in range(1, 4):
                a(f'v_fmac_f32 v{u}, s{56+r}, v{VW + (comp*4+r)*4 + ch}')
    a('s_waitcnt vmcnt(0)')
    T = VU + 12
    def unpack(seg, ch, dst):
        d = VX + 2 * seg + ch // 2
        if ch % 2 == 0: a(f'v_lshlrev_b32 v{dst}, 16, v{d}')
        else: a(f'v_and_b32 v{dst}, 0xffff0000, v{d}')
    for ch in range(4):
        unpack(0, ch, T)
        a(f'v_fmac_f32 v{VACC+ch}, v{T}, v{VU+ch}')
        unpack(1, ch, T + 1)
        a(f'v_mul_f32 v{T+1}, v{T+1}, v{VU+4+ch}')
        unpack(2, ch, T + 2)
        a(f'v_mul_f32 v{T+2}, v{T+2}, v{VU+8+ch}')
        for c in range(3):
            unpack(3 + c, ch, T + 3)
            a(f'v_fmac_f32 v{VACC+4+4*c+ch}, v{T+1}, v{T+3}')
            a(f'v_fmac_f32 v{VACC+4+4*c+ch}, s{60+c}, v{T+2}')
    a.label('L_k2_next')
    a('s_add_u32 s38, s38, 1')
    a('s_branch L_k2_edge')
    a.label('L_k2_store')
    a('s_waitcnt vmcnt(0)')
    for c in range(4):
        for h in range(2):
            d = VSV + 2 * c + h
            a(f'v_lshlrev_b32 v{T}, 16, v{d}')
            a(f'v_and_b32 v{T+1}, 0xffff0000, v{d}')
            a(f'v_add_f32 v{T}, v{T}, v{VACC+4*c+2*h}')
            a(f'v_add_f32 v{T+1}, v{T+1}, v{VACC+4*c+2*h+1}')
            a(f'v_cvt_pk_bf16_f32 v{d}, v{T}, v{T+1}')
        a(f'buffer_store_dwordx2 v[{VSV+2*c}:{VSV+2*c+1}], v2, s[24:27], s41 offen offset:{c*512}')
    a(f's_add_u32 s12, s12, {K2U_WAVES}')
    a('s_branch L_k2_node')
    a.label('L_k2_exit')
    a('s_endpgm')
    return a.finalize()

def build(opt=None, path=None):
    opt = opt or {}
    hdr = HEADER
    hdr += f'; @launch kernel=k1_kernel grid=({K1_GRID},1,1) block=(256,1,1) lds={K1_LDS}\n'
    hdr += f'; @launch kernel=k2_kernel grid=({K2U_WAVES//4},1,1) block=(256,1,1) lds=0\n'
    src = hdr + '.amdgcn_target "amdgcn-amd-amdhsa--gfx950"\n.text\n'
    src += k1(opt) + k2u(opt)
    src += '.section .rodata,"a"\n' + kd('k1_kernel', 256, 96) + kd('k2_kernel', 120, 96)
    if path: open(path, 'w').write(src)
    return src

if __name__ == '__main__':
    build({}, sys.argv[1] if len(sys.argv) > 1 else 'standalone__molecular_angular_painn__graph.s')
```
